```python
import torch

def _softmax(x, axis=-1):
    return torch.softmax(x, dim=axis)
def _gelu(x):
    return torch.nn.functional.gelu(x, approximate="tanh")
def _silu(x):
    return torch.nn.functional.silu(x)
def _sigmoid(x):
    return torch.sigmoid(x)
def _layernorm(x, axis=-1, eps=1e-5):
    m = x.mean(dim=axis, keepdim=True)
    v = x.var(dim=axis, keepdim=True, unbiased=False)
    return (x - m) / torch.sqrt(v + eps)
def _scatter_add(tgt, idx, src, axis=0):
    return tgt.clone().index_add_(axis, idx, src)
def _segment_sum(src, seg, n):
    out = torch.zeros((n,) + src.shape[1:], dtype=src.dtype)
    return out.index_add_(0, seg, src)
def _pad(x, pw):
    flat = tuple(v for pair in reversed(pw) for v in pair)
    return torch.nn.functional.pad(x, flat)

kernel_name = 'sequential_preLN__sliding_block_cached__glu_gated_bilinear__decode'

def setup_inputs():

    _w = (lambda a: (lambda t: t.to(torch.bfloat16) if t.is_floating_point() else t)(torch.as_tensor(a)))
    def _A_setup():
        B, Sq, D = 1, 1, 512
        Hq, Hkv, Sk, Dh = 32, 8, 65536, 128
        assert Hq % Hkv == 0, (Hq, Hkv)
        return {
            "x": _w((lambda *s: torch.randn(*s, dtype=torch.bfloat16) * 0.05)(B, Sq, D)),
            "k_cache": _w((lambda *s: torch.randn(*s, dtype=torch.bfloat16) * 1.6)(B, Hkv, Sk, Dh)),
            "v_cache": _w((lambda *s: torch.randn(*s, dtype=torch.bfloat16) * 0.8)(B, Hkv, Sk, Dh)),
            "wq": _w((lambda *s: torch.randn(*s, dtype=torch.bfloat16) * 1.6)(D, Hq * Dh) * (D ** -0.5)),
            "wo": _w((lambda *s: torch.randn(*s, dtype=torch.bfloat16) * 0.8)(Hq * Dh, D) * ((Hq * Dh) ** -0.5)),
        }
    _A_in = _A_setup()

    def _B_setup():
        B, S, D, F = 1, 1, 512, 1792
        return {
            "x": _w((lambda *s: torch.randn(*s, dtype=torch.bfloat16) * 0.05)(B, S, D)),
            "w_gate": _w((lambda *s: torch.randn(*s, dtype=torch.bfloat16) * 0.4)(D, F) * (D ** -0.5)),
            "w_up": _w((lambda *s: torch.randn(*s, dtype=torch.bfloat16) * 0.4)(D, F) * (D ** -0.5)),
            "w_down": _w((lambda *s: torch.randn(*s, dtype=torch.bfloat16) * 0.4)(F, D) * (F ** -0.5)),
        }
    _B_in = _B_setup()

    return {
        "A_x": _A_in["x"],
        "A_k_cache": _A_in["k_cache"],
        "A_v_cache": _A_in["v_cache"],
        "A_wq": _A_in["wq"],
        "A_wo": _A_in["wo"],
        "B_x": _B_in["x"],
        "B_w_gate": _B_in["w_gate"],
        "B_w_up": _B_in["w_up"],
        "B_w_down": _B_in["w_down"],
    }

def reference(A_x, A_k_cache, A_v_cache, A_wq, A_wo, B_x, B_w_gate, B_w_up, B_w_down):
    def _A_ref(x, k_cache, v_cache, wq, wo):
        B, Sq, D = x.shape
        Hq, Dh = 32, 128
        Hkv, Sk = k_cache.shape[1], k_cache.shape[2]
        W = min(4096, max(256, Sk // 4))
        rep = Hq // Hkv
        q = (lambda x, *d: x.permute(*d))((x @ wq).reshape(B, Sq, Hq, Dh), 0, 2, 1, 3)
        k = (lambda x, n, axis: torch.repeat_interleave(x, n, dim=axis))(k_cache[:, :, Sk - W:, :], rep, axis=1)
        v = (lambda x, n, axis: torch.repeat_interleave(x, n, dim=axis))(v_cache[:, :, Sk - W:, :], rep, axis=1)
        scores = torch.einsum("bhqd,bhkd->bhqk", q, k) * (Dh ** -0.5)
        p = _softmax(scores, axis=-1)
        o = torch.einsum("bhqk,bhkd->bhqd", p, v)
        return (lambda x, *d: x.permute(*d))(o, 0, 2, 1, 3).reshape(B, Sq, Hq * Dh) @ wo

    def _B_ref(x, w_gate, w_up, w_down):
        g = torch.einsum("bsd,df->bsf", x, w_gate)
        u = torch.einsum("bsd,df->bsf", x, w_up)
        h = g * u
        return torch.einsum("bsf,fd->bsd", h, w_down)

    x = A_x
    h = x + _A_ref(_layernorm(x, axis=-1), A_k_cache, A_v_cache, A_wq, A_wo)
    h2 = h + _B_ref(_layernorm(h, axis=-1), B_w_gate, B_w_up, B_w_down)
    return h2
```

```python
KN = 'sequential_preLN__sliding_block_cached__glu_gated_bilinear__decode'
class Asm:
    def __init__(self): self.l = []
    def __call__(self, s=''):
        for x in s.split('\n'):
            x = x.strip()
            if x: self.l.append(('' if x.endswith(':') else '    ') + x)
    def text(self): return '\n'.join(self.l) + '\n'
def header(grid, block, lds, kname=KN + '_kernel'):
    return f"""; @launch grid=({grid},1,1) block=({block},1,1) lds={lds}
.amdgcn_target "amdgcn-amd-amdhsa--gfx950"
.text
.globl {kname}
.p2align 8
.type {kname},@function
{kname}:
"""
def footer(vgpr, sgpr=102, accum=None, kname=KN + '_kernel'):
    if accum is None: accum = (min(vgpr,256) + 3) // 4 * 4
    return f""".section .rodata,"a"
.p2align 6
.amdhsa_kernel {kname}
  .amdhsa_next_free_vgpr {vgpr}
  .amdhsa_next_free_sgpr {sgpr}
  .amdhsa_accum_offset {accum}
  .amdhsa_group_segment_fixed_size 0
  .amdhsa_kernarg_size 96
  .amdhsa_user_sgpr_count 2
  .amdhsa_user_sgpr_kernarg_segment_ptr 1
  .amdhsa_system_sgpr_workgroup_id_x 1
.end_amdhsa_kernel
"""
```

```python
import re
def regs(op):
    op = op.strip()
    m = re.fullmatch(r'-?(?:abs\()?([vsa])(\d+)\)?', op)
    if m: return {(m.group(1), int(m.group(2)))}
    m = re.fullmatch(r'-?([vsa])\[(\d+):(\d+)\]', op)
    if m: return {(m.group(1), i) for i in range(int(m.group(2)), int(m.group(3)) + 1)}
    if op == 'vcc': return {('s', 'vcc')}
    if op == 'exec': return {('s', 'exec')}
    if op == 'm0': return {('s', 'm0')}
    return set()
TRANS = ('v_exp_f32', 'v_log_f32', 'v_rcp_f32', 'v_rsq_f32', 'v_sqrt_f32', 'v_sin_f32', 'v_cos_f32')
class I:
    def __init__(s, line):
        s.line = line
        t = line.split(';')[0].strip()
        s.label = t.endswith(':'); s.op = ''; s.dst = set(); s.src = set(); s.cls = 'other'
        s.srcC = set(); s.srcAB = set(); s.passes = 0; s.data = set()
        if not t or s.label or t.startswith('.'): s.cls = 'none'; return
        p = t.split(None, 1); s.op = p[0]
        rest = p[1] if len(p) > 1 else ''
        ops = [x.strip() for x in re.split(r',(?![^\[]*\])', rest)]
        if ops: ops[-1:] = ops[-1].split()
        R = [regs(o) for o in ops]
        op = s.op
        s.dpp = '_dpp' in op or 'quad_perm' in t or 'row_' in t
        s.sdwa = '_sdwa' in op
        if op == 's_nop': s.cls = 'nop'; s.n = int(rest.strip()) + 1; return
        if op.startswith('v_mfma'):
            s.cls = 'mfma'; s.dst = R[0]; s.srcAB = R[1] | R[2]; s.srcC = R[3]; s.src = s.srcAB | s.srcC
            s.passes = 2 if '4x4x4' in op else 4 if '16x16x32' in op else 8
        elif op.startswith('v_'):
            s.cls = 'valu'; s.dst = R[0]; s.src = set().union(*R[1:]) if len(R) > 1 else set()
            if 'permlane' in op: s.dst = R[0] | R[1]; s.src = R[0] | R[1]
            if 'fmac' in op or 'dot2c' in op or s.dpp or 'writelane' in op: s.src |= R[0]
            if op.startswith('v_cndmask') and len(R) < 4: s.src |= {('s', 'vcc')}
        elif op.startswith(('global_', 'buffer_')):
            s.cls = 'vmem'
            if 'store' in op or 'lds' in t.split() or '_lds_' in op or ('atomic' in op and 'sc0' not in t):
                s.src = set().union(*R)
                if 'store' in op and ('x3' in op or 'x4' in op): s.data = R[1] if op.startswith('global_') else R[0]
                if '_lds_' in op or 'lds' in t.split(): s.src |= {('s', 'm0')}; s.ldsdma = True
            else: s.dst = R[0]; s.src = set().union(*R[1:])
        elif op.startswith('ds_'):
            s.cls = 'ds'
            if 'read' in op or 'permute' in op or 'swizzle' in op: s.dst = R[0]; s.src = set().union(*R[1:])
            else: s.src = set().union(*R)
        elif op.startswith('s_'):
            s.cls = 'salu'
            if op.startswith(('s_cmp', 's_cbranch', 's_branch', 's_waitcnt', 's_barrier', 's_sleep', 's_setprio', 's_endpgm', 's_bitcmp')): s.src = set().union(*R) if R else set()
            else: s.dst = R[0] if R else set(); s.src = set().union(*R[1:]) if len(R) > 1 else set()
            if 'saveexec' in op: s.dst |= {('s', 'exec')}
def need(p, c):
    n = 0
    V = lambda S: {r for r in S if r[0] in 'va'}
    S = lambda S_: {r for r in S_ if r[0] == 's'}
    if p.cls == 'valu':
        vd = V(p.dst); sd = S(p.dst)
        if vd & c.src:
            if c.cls == 'valu' and c.dpp: n = max(n, 2)
            if c.cls == 'valu' and 'permlane' in c.op: n = max(n, 2)
            if c.op.startswith(('v_readlane', 'v_readfirstlane')): n = max(n, 1)
            if c.cls == 'mfma': n = max(n, 2)
            if p.op.replace('_e32', '').replace('_e64', '') in TRANS and c.cls in ('valu', 'mfma'): n = max(n, 1)
            if p.sdwa and c.cls == 'valu': n = max(n, 1)
        if sd & c.src:
            if c.cls == 'valu': n = max(n, 4 if c.op.startswith(('v_readlane', 'v_writelane')) else 2)
            if c.cls == 'vmem': n = max(n, 5)
            if c.cls == 'salu': n = max(n, 1)
    if p.cls == 'mfma':
        big = {2: 5, 4: 8, 8: 12}[p.passes]
        if c.cls == 'mfma':
            if p.dst & c.srcAB: n = max(n, big)
            if p.dst & c.srcC:
                n = max(n, (2 if p.passes == 2 else 0) if (p.dst == c.srcC and p.passes == c.passes) else {2: 4, 4: 6, 8: 10}[p.passes])
            elif p.dst & c.dst: n = max(n, big)
        elif c.cls in ('valu', 'vmem', 'ds'):
            if p.dst & (c.src | c.dst): n = max(n, big)
            if c.cls == 'valu' and p.srcC & c.dst: n = max(n, {2: 1, 4: 3, 8: 7}[p.passes])
    if p.cls == 'vmem' and p.data and (p.data & c.dst): n = max(n, 2)
    if p.cls == 'salu' and ('s', 'm0') in p.dst and getattr(c, 'ldsdma', False): n = max(n, 1)
    return n
def pad(lines):
    out = []; hist = []
    for ln in lines:
        c = I(ln)
        if c.cls == 'none': out.append(ln); continue
        dist = 0; req = 0
        for p in reversed(hist):
            if dist >= 12: break
            if p.cls != 'nop': req = max(req, need(p, c) - dist)
            dist += p.n if p.cls == 'nop' else 1
        if req > 0:
            nl = f'    s_nop {req-1}'; out.append(nl); hist.append(I(nl))
        out.append(ln); hist.append(c); hist = hist[-16:]
    return out
```

```python
import sys
from asmlib import *
from hazard import pad

E_OFF, X_OFF, H1_OFF, H2S_OFF, H3B_OFF = 0, 0x1000, 0x10000, 0x20000, 0x28000
H2D_OFF, H3A_OFF, H4_OFF, TS_OFF = 0x40000, 0xC0000, 0x140000, 0x190000
L_K, L_V = 0, 32768
L_QP = 65536; L_QL = L_QP + 2048; L_MX = L_QL + 1280; L_LS = L_MX + 64; L_PL = L_LS + 64
L_ST = L_PL + 1152; L_HN = L_ST + 32; L_GU = L_HN + 1024; L_END = L_GU + 512
LOG2E = '0x3fb8aa3b'
SCALE = '0x3db504f3'
NFFN = 14

def gen(nV1=4, nt='nt', diag=False, spin=200000, force_slow=False):
    a = Asm()
    NT = (' ' + nt) if nt else ''
    stamp_n = [0]
    def stamp(k):
        if diag: a(f's_memrealtime s[96:97]\ns_waitcnt lgkmcnt(0)\nv_writelane_b32 v200, s96, {k}')
    def exec_set(lo, hi): a(f's_mov_b32 exec_lo, {lo:#x}\ns_mov_b32 exec_hi, {hi:#x}')
    def exec_all(): a('s_mov_b64 exec, -1')
    def dpp(op, d, s0, s1, ctl, rm='0xf'): a(f'{op}_dpp v{d}, v{s0}, v{s1} {ctl} row_mask:{rm} bank_mask:0xf')
    def row16(op, rs):
        for ctl in ('quad_perm:[1,0,3,2]', 'quad_perm:[2,3,0,1]', 'row_half_mirror', 'row_mirror'):
            for r in rs: dpp(op, r, r, r, ctl)
    def to63(op, rs):
        for ctl, rm in (('row_bcast:15', '0xa'), ('row_bcast:31', '0xc')):
            for r in rs: dpp(op, r, r, r, ctl, rm)
    def unpack(dlo, dhi, s): a(f'v_lshlrev_b32 v{dlo}, 16, v{s}\nv_and_b32 v{dhi}, s60, v{s}')
    def bf16r(d, s): a(f'v_cvt_pk_bf16_f32 v{d}, v{s}, v{s}\nv_and_b32 v{d}, s60, v{d}')
    def untag(regs_, tags, acc, mask):
        for r, t in zip(regs_, tags): a(f'v_xor_b32 v{r}, {t}, v{r}')
        rr = list(regs_)
        if len(rr) == 1: a(f'v_and_b32 v{acc}, {mask}, v{rr[0]}')
        else:
            a(f'v_or_b32 v{acc}, v{rr[0]}, v{rr[1]}'); rr = rr[2:]
            while len(rr) >= 2: a(f'v_or3_b32 v{acc}, v{rr[0]}, v{rr[1]}, v{acc}'); rr = rr[2:]
            if rr: a(f'v_or_b32 v{acc}, v{rr[0]}, v{acc}')
            a(f'v_and_b32 v{acc}, {mask}, v{acc}')
    def spin_guard(): a(f's_add_u32 s43, s43, 1\ns_cmp_gt_u32 s43, {spin}\ns_cbranch_scc1 L_end')
    T10 = ['s34', 's35', 's36', 's37']; T8 = ['s38', 's39', 's40', 's41']
    def store_mode(ins):
        n = stamp_n[0]; stamp_n[0] += 1
        a(f's_cmp_lg_u32 s42, 0\ns_cbranch_scc1 L_slow{n}\n{ins}\nL_back{n}:')
        slow.append(f'L_slow{n}:\n{ins} sc1\ns_branch L_back{n}')
    slow = []

    a('s_load_dwordx16 s[4:19], s[0:1], 0\ns_load_dwordx8 s[20:27], s[0:1], 64')
    if diag: a('s_memrealtime s[98:99]')
    a('s_cmp_ge_u32 s2, 256\ns_cbranch_scc1 L_end')
    a('s_getpc_b64 s[54:55]\nL_pc:\nv_lshlrev_b32 v2, 7, v0\nv_min_u32 v2, L_end-L_pc, v2\nglobal_load_dword v3, v2, s[54:55]')
    a('v_lshrrev_b32 v2, 6, v0\nv_and_b32 v1, 63, v0\nv_readfirstlane_b32 s30, v2')
    a('s_and_b32 s28, s2, 7\ns_lshr_b32 s29, s2, 3')
    a('s_lshr_b32 s56, s29, 3\ns_and_b32 s57, s29, 7')
    a('v_lshlrev_b32 v10, 4, v1')
    a('s_lshl_b32 s58, s56, 8\ns_lshl_b32 s59, s30, 6\ns_add_u32 s58, s58, s59')
    a('v_and_b32 v11, 0x38, v1\nv_add_u32 v11, s58, v11')
    a('s_lshl_b32 s58, s28, 10\ns_lshl_b32 s59, s57, 7\ns_add_u32 s58, s58, s59')
    a('v_and_b32 v12, 7, v1\nv_lshlrev_b32 v12, 4, v12\nv_lshl_add_u32 v12, v11, 12, v12\nv_add_u32 v12, s58, v12')
    a('s_lshl_b32 s58, s28, 24\ns_lshl_b32 s59, s29, 15\ns_add_u32 s58, s58, s59\ns_lshl_b32 s31, s30, 13\ns_add_u32 s58, s58, s31\ns_add_u32 s58, s58, 0xF01000')
    a('v_lshrrev_b32 v2, 4, v1\nv_and_b32 v14, 15, v1\nv_xor_b32 v13, v14, v2\nv_lshlrev_b32 v13, 4, v13\nv_lshl_add_u32 v13, v2, 8, v13')
    a('s_add_u32 m0, s31, 4096')
    a('s_waitcnt lgkmcnt(0)')
    a('s_load_dwordx2 s[32:33], s[26:27], 0')
    a('global_load_dwordx4 v[16:19], v10, s[4:5]\nglobal_load_dwordx2 v[20:21], v11, s[4:5]')
    for i in range(4):
        a(f'global_load_dwordx4 v[{24+4*i}:{27+4*i}], v12, s[10:11]{NT}')
        if i < 3: a('v_add_u32 v12, 0x2000, v12')
    a('s_add_u32 s44, s6, s58\ns_addc_u32 s45, s7, 0\ns_add_u32 s46, s8, s58\ns_addc_u32 s47, s9, 0')
    a('v_xor_b32 v40, 64, v13\nv_xor_b32 v41, 0x80, v13\nv_xor_b32 v42, 0xc0, v13')
    for jj in range(8):
        a(f'global_load_lds_dwordx4 v{[13,40,41,42][jj&3]}, s[44:45] offset:{jj*1024-4096}{NT}')
    stamp(0)
    a('s_mov_b32 s60, 0xffff0000\ns_mov_b32 s43, 0\nv_mov_b32 v8, 0x3ff\nv_mov_b32 v9, 0xff')
    a('v_and_b32 v40, 1, v1\nv_lshlrev_b32 v40, 4, v40\nv_mov_b32 v41, 0xffff\nv_lshlrev_b32 v40, v40, v41\nv_bfe_u32 v41, v1, 1, 2')
    for j in range(4): a(f'v_cmp_eq_u32 vcc, {j}, v41\nv_cndmask_b32 v{4+j}, 0, v40, vcc')
    a('v_lshrrev_b32 v40, 1, v14\nv_xor_b32 v40, v40, v2\nv_and_b32 v41, 1, v14\nv_lshl_add_u32 v40, v40, 1, v41\nv_lshlrev_b32 v40, 4, v40\nv_lshl_add_u32 v22, v2, 8, v40\nv_xor_b32 v23, 0x80, v22')
    a('s_waitcnt vmcnt(13)')
    for i in range(4): unpack(40+2*i, 41+2*i, 16+i)
    a('v_add_f32 v48, v40, v41\nv_add_f32 v49, v42, v43\nv_add_f32 v50, v44, v45\nv_add_f32 v51, v46, v47\nv_add_f32 v48, v48, v49\nv_add_f32 v50, v50, v51\nv_add_f32 v48, v48, v50')
    row16('v_add_f32', [48]); to63('v_add_f32', [48])
    a('v_mul_f32 v48, 0x3b000000, v48\nv_readlane_b32 s61, v48, 63')
    for i in range(8): a(f'v_subrev_f32 v{40+i}, s61, v{40+i}')
    a('v_mul_f32 v48, v40, v40\nv_mul_f32 v49, v41, v41')
    for i in range(2, 8): a(f'v_fmac_f32 v{48+(i&1)}, v{40+i}, v{40+i}')
    a('v_add_f32 v48, v48, v49')
    row16('v_add_f32', [48]); to63('v_add_f32', [48])
    a('v_mul_f32 v48, 0x3b000000, v48\nv_mov_b32 v50, s61')
    bf16r(48, 48); bf16r(50, 50)
    a('v_add_f32 v48, 0x3727c5ac, v48'); bf16r(48, 48)
    a('v_sqrt_f32 v48, v48'); bf16r(48, 48)
    a('v_rcp_f32 v48, v48\ns_waitcnt vmcnt(12)')
    unpack(40, 41, 20); unpack(42, 43, 21)
    a('v_readlane_b32 s62, v48, 63')
    for i in range(4): a(f'v_sub_f32 v{40+i}, v{40+i}, v50')
    a('v_cvt_pk_bf16_f32 v44, v40, v41\nv_cvt_pk_bf16_f32 v45, v42, v43')
    unpack(40, 41, 44); unpack(42, 43, 45)
    for i in range(4): a(f'v_mul_f32 v{40+i}, s62, v{40+i}')
    for i in range(4): a(f'v_cvt_pk_bf16_f32 v{40+i}, v{40+i}, v{40+i}')
    for i in range(4):
        for j in range(4): a(f'v_and_b32 v{52+4*i+j}, v{40+i}, v{4+j}')
    a('s_waitcnt lgkmcnt(0)\ns_add_u32 s32, s32, 1\ns_addc_u32 s33, s33, 0')
    a('s_and_b32 s34, s32, 0x3ff\ns_bfe_u32 s35, s32, 0xa000a\ns_bfe_u32 s36, s32, 0xa0014\ns_lshr_b64 s[62:63], s[32:33], 30\ns_and_b32 s37, s62, 0x3ff')
    a('s_and_b32 s38, s32, 0xff\ns_bfe_u32 s39, s32, 0x80008\ns_bfe_u32 s40, s32, 0x80010\ns_lshr_b32 s41, s32, 24')
    a('s_getreg_b32 s63, hwreg(HW_REG_XCC_ID, 0, 4)\ns_lshl_b32 s62, s32, 4\ns_or_b32 s63, s63, s62')
    a(f'v_lshrrev_b32 v40, 5, v1\ns_lshl_b32 s58, s30, 9\ns_add_u32 s58, s58, {L_QP}\nv_lshlrev_b32 v41, 8, v40\nv_and_b32 v42, 7, v1\nv_lshl_add_u32 v41, v42, 5, v41\nv_and_b32 v42, 16, v1\nv_add3_u32 v41, v41, v42, s58')
    stamp(1)
    for i in range(4):
        a(f's_waitcnt vmcnt({11-i})')
        a(f'v_mfma_f32_16x16x32_bf16 v[68:71], v[{52+4*i}:{55+4*i}], v[{24+4*i}:{27+4*i}], {"0" if i == 0 else "v[68:71]"}')
    stamp(2)
    a(f'v_lshlrev_b32 v43, 2, v1\nv_add_u32 v42, {L_QP}, v43')
    a('v_and_b32 v44, 3, v1\nv_lshlrev_b32 v44, 3, v44\nv_lshrrev_b32 v44, v44, s32')
    exec_set(0x00ff00ff, 0xff00ff00)
    a('ds_write_b128 v41, v[68:71]')
    exec_all()
    a(f's_lshl_b32 s58, s28, 13\ns_add_u32 s58, s58, {H1_OFF}\ns_lshl_b32 s59, s56, 11\ns_add_u32 s59, s59, s58\ns_lshl_b32 s62, s57, 8\ns_add_u32 s59, s59, s62')
    a('v_add_u32 v43, s59, v43')
    a('s_waitcnt lgkmcnt(0)\ns_barrier')
    a('s_cmp_lg_u32 s30, 0\ns_cbranch_scc1 L_nopub')
    for i in range(4): a(f'ds_read2st64_b32 v[{46+2*i}:{47+2*i}], v42 offset0:{2*i} offset1:{2*i+1}')
    a(f's_lshl_b32 s59, s28, 7\ns_lshl_b32 s62, s29, 2\ns_add_u32 s59, s59, s62\ns_add_u32 s59, s59, {X_OFF}\nv_mov_b32 v54, s59\nv_mov_b32 v55, s63')
    a('s_mov_b64 exec, 1\nglobal_store_dword v54, v55, s[26:27] sc1\ns_mov_b64 exec, -1')
    a('s_waitcnt lgkmcnt(2)\nv_add_f32 v46, v46, v47\nv_add_f32 v48, v48, v49\ns_waitcnt lgkmcnt(0)\nv_add_f32 v50, v50, v51\nv_add_f32 v52, v52, v53\nv_add_f32 v46, v46, v48\nv_add_f32 v50, v50, v52\nv_add_f32 v46, v46, v50')
    a('v_bfi_b32 v46, v9, v44, v46\nglobal_store_dword v43, v46, s[26:27] sc1')
    a('L_nopub:')
    stamp(3)
    a(f's_add_u32 m0, s31, {L_V + 4096}')
    a('s_lshl_b32 s59, s30, 9\ns_add_u32 s58, s58, s59\nv_and_b32 v47, 31, v1\nv_lshlrev_b32 v45, 12, v40\nv_lshl_add_u32 v45, v47, 4, v45\nv_add_u32 v45, s58, v45')
    a(f's_lshl_b32 s59, s28, 7\ns_add_u32 s59, s59, {X_OFF}\nv_lshlrev_b32 v46, 2, v47\nv_add_u32 v46, s59, v46')
    def vload(jj): a(f'global_load_lds_dwordx4 v{22 + ((jj >> 1) & 1)}, s[46:47] offset:{jj*1024-4096}{NT}')
    def qpoll(): a('global_load_dwordx4 v[24:27], v45, s[26:27] sc1\nglobal_load_dwordx4 v[28:31], v45, s[26:27] offset:2048 sc1\nglobal_load_dword v32, v46, s[26:27] sc1')
    for jj in range(nV1): vload(jj)
    qpoll()
    for jj in range(nV1, 8): vload(jj)
    a('s_lshl_b32 s58, s28, 19\ns_lshl_b32 s59, s29, 14\ns_add_u32 s58, s58, s59\ns_lshl_b32 s59, s30, 8\ns_add_u32 s58, s58, s59\ns_add_u32 s50, s12, s58\ns_addc_u32 s51, s13, 0\ns_add_u32 s52, s50, 0x2000\ns_addc_u32 s53, s51, 0')
    a('v_lshlrev_b32 v48, 4, v14\nv_lshl_add_u32 v48, v2, 11, v48')
    for s in range(4): a(f'global_load_dwordx4 v[{112+4*s}:{115+4*s}], v48, s[{50+2*(s>>1)}:{51+2*(s>>1)}] offset:{(s&1)*1024}{NT}')
    a('v_lshlrev_b32 v49, 3, v40\nv_xor_b32 v49, v49, v14\nv_lshlrev_b32 v49, 4, v49\nv_lshl_add_u32 v49, v47, 8, v49\nv_add_u32 v49, s31, v49')
    for b8 in range(1, 8): a(f'v_xor_b32 v{49+b8}, {b8 << 4}, v49')
    a(f's_mul_i32 s58, s30, 320\ns_add_u32 s58, s58, {L_QL}\nv_lshlrev_b32 v33, 3, v47\nv_lshl_add_u32 v33, v40, 2, v33\nv_add_u32 v33, s58, v33')
    a(f'v_and_b32 v34, 3, v1\nv_mul_u32_u24 v35, 320, v34\nv_and_b32 v36, 0x3c, v1\nv_lshl_add_u32 v35, v36, 2, v35\nv_add_u32 v35, {L_QL}, v35')
    a(f's_waitcnt vmcnt({8 + 3 + 4})')
    for b8 in range(8): a(f'ds_read_b128 v[{72+4*b8}:{75+4*b8}], v{49+b8}')
    stamp(4)
    a(f's_waitcnt vmcnt({8 - nV1 + 4})')
    a('L_q_chk:')
    untag(range(24, 32), T8 + T8, 37, '0xff')
    a('v_xor_b32 v32, s63, v32\nv_lshrrev_b32 v38, 4, v32\nv_or_b32 v37, v37, v38\nv_cmp_ne_u32 vcc, 0, v37\ns_cbranch_vccnz L_q_retry')
    stamp(5)
    a('v_cmp_ne_u32 vcc, 0, v32')
    for i in range(4): a(f'v_add_f32 v{24+i}, v{24+i}, v{28+i}')
    a('s_cmp_lg_u64 vcc, 0\ns_cselect_b32 s42, 1, 0')
    if force_slow: a('s_mov_b32 s42, 1')
    a('v_permlane32_swap_b32 v24, v26\nv_permlane32_swap_b32 v25, v27\nv_add_f32 v24, v24, v26\nv_add_f32 v25, v25, v27\nv_cvt_pk_bf16_f32 v24, v24, v25\nds_write_b32 v33, v24')
    a(f's_lshl_b32 s58, s30, 2\ns_add_u32 s58, s58, {L_MX}\nv_lshlrev_b32 v36, 4, v2\nv_add_u32 v36, s58, v36')
    a(f'v_lshlrev_b32 v37, 5, v40\nv_add_u32 v37, {L_MX}, v37')
    a('s_waitcnt lgkmcnt(0)\ns_barrier\nds_read_b128 v[24:27], v35')
    a(f's_lshl_b32 s58, s30, 6\ns_add_u32 s58, s58, {L_PL}\nv_mul_u32_u24 v38, 576, v40\nv_lshl_add_u32 v38, v47, 1, v38\nv_add_u32 v38, s58, v38')
    a('s_waitcnt lgkmcnt(0)')
    for b8 in range(8):
        for h in range(2):
            acc = f'v[{28+4*h}:{31+4*h}]'
            a(f'v_mfma_f32_4x4x4_16b_bf16 {acc}, v[{24+2*h}:{25+2*h}], v[{72+4*b8+2*h}:{73+4*b8+2*h}], {"0" if b8 == 0 else acc} cbsz:3 abid:{b8}')
    for i in range(4): a(f'v_add_f32 v{28+i}, v{28+i}, v{32+i}')
    a('v_permlane32_swap_b32 v28, v30\nv_permlane32_swap_b32 v29, v31\nv_add_f32 v28, v28, v30\nv_add_f32 v29, v29, v31')
    a('v_cvt_pk_bf16_f32 v30, v28, v29'); unpack(28, 29, 30)
    a(f'v_mul_f32 v28, {SCALE}, v28\nv_mul_f32 v29, {SCALE}, v29\nv_cvt_pk_bf16_f32 v30, v28, v29'); unpack(28, 29, 30)
    dpp('v_max_f32', 30, 28, 28, 'quad_perm:[1,0,3,2]'); dpp('v_max_f32', 31, 29, 29, 'quad_perm:[1,0,3,2]')
    for ctl in ('quad_perm:[2,3,0,1]', 'row_half_mirror', 'row_mirror'):
        for r in (30, 31): dpp('v_max_f32', r, r, r, ctl)
    a('v_permlane16_swap_b32 v30, v31\nv_max_f32 v30, v30, v31')
    exec_set(0x00010001, 0x00010001)
    a('ds_write_b32 v36, v30'); exec_all()
    a('s_waitcnt lgkmcnt(0)\ns_barrier\nds_read_b128 v[40:43], v37\nds_read_b128 v[44:47], v37 offset:16')
    a('v_bfe_u32 v30, v1, 2, 2\nv_and_b32 v31, 1, v2\nv_lshl_add_u32 v31, v31, 2, v30\ns_lshl_b32 s58, s30, 1\nv_xor_b32 v31, s58, v31\nv_lshlrev_b32 v31, 5, v31')
    a(f'v_lshl_add_u32 v30, v2, 3, v30\nv_lshl_add_u32 v31, v30, 8, v31\nv_and_b32 v34, 3, v1\nv_lshl_add_u32 v31, v34, 3, v31\nv_add_u32 v50, {L_V}, v31\nv_xor_b32 v51, 32, v50')
    a(f'v_mul_u32_u24 v52, 288, v34\nv_lshl_add_u32 v52, v2, 4, v52\nv_add_u32 v52, {L_PL}, v52\nv_lshlrev_b32 v53, 4, v34\nv_add_u32 v53, {L_MX}, v53')
    a('s_waitcnt lgkmcnt(0)')
    a('v_max3_f32 v40, v40, v41, v42\nv_max3_f32 v44, v44, v45, v46\nv_max_f32 v40, v40, v43\nv_max_f32 v44, v44, v47')
    a(f'v_sub_f32 v28, v28, v40\nv_sub_f32 v29, v29, v44\nv_mul_f32 v28, {LOG2E}, v28\nv_mul_f32 v29, {LOG2E}, v29\nv_exp_f32 v28, v28\nv_exp_f32 v29, v29')
    a('v_cvt_pk_bf16_f32 v30, v28, v29\nds_write_b16 v38, v30\nds_write_b16_d16_hi v38, v30 offset:288')
    row16('v_add_f32', [28, 29])
    a('v_permlane16_swap_b32 v28, v29\nv_add_f32 v28, v28, v29')
    exec_set(0x00010001, 0x00010001)
    a('ds_write_b32 v36, v28 offset:64'); exec_all()
    stamp(6)
    a(f'v_bfe_u32 v30, v1, 2, 1\ns_lshl_b32 s58, s30, 1\nv_add_u32 v30, s58, v30\nv_lshl_add_u32 v30, v34, 3, v30\nv_lshlrev_b32 v30, 11, v30\nv_lshl_add_u32 v30, v2, 4, v30')
    a(f's_lshl_b32 s58, s28, 16\ns_lshl_b32 s59, s29, 6\ns_add_u32 s59, s59, s58\ns_add_u32 s59, s59, {H2D_OFF}\nv_add_u32 v30, s59, v30')
    a(f's_lshl_b32 s59, s28, 11\ns_lshl_b32 s62, s29, 4\ns_add_u32 s62, s62, s59\ns_add_u32 s62, s62, {H2S_OFF}\nv_lshlrev_b32 v31, 9, v34\nv_add_u32 v31, s62, v31')
    a('v_and_b32 v32, 8, v1\nv_cmp_ne_u32 s[64:65], 0, v32\nv_and_b32 v32, 4, v1\nv_cmp_ne_u32 s[66:67], 0, v32\nv_cndmask_b32 v54, v30, v31, s[64:65]')
    a(f's_lshl_b32 s62, s29, 11\ns_add_u32 s58, s58, s62\ns_add_u32 s58, s58, {H2D_OFF}\nv_lshlrev_b32 v55, 5, v1\nv_add_u32 v55, s58, v55')
    a(f's_lshr_b32 s62, s29, 3\ns_lshl_b32 s62, s62, 9\ns_add_u32 s59, s59, s62\ns_add_u32 s59, s59, {H2S_OFF}\nv_lshrrev_b32 v56, 1, v1\nv_lshlrev_b32 v56, 4, v56\nv_add_u32 v56, s59, v56')
    a('s_mov_b32 s68, 0x00ff00ff\ns_cmp_eq_u32 s30, 0\ns_cselect_b32 s68, 0x00ff0fff, s68')
    a('s_waitcnt vmcnt(4) lgkmcnt(0)\ns_barrier')
    stamp(7)
    for s in range(4):
        a(f'ds_read_b128 v[{24+4*s}:{27+4*s}], v52 offset:{s*64}')
        for t in range(2):
            for j in range(2): a(f'ds_read_b64_tr_b16 v[{72+16*t+4*s+2*j}:{73+16*t+4*s+2*j}], v{50+t} offset:{s*8192+j*1024}')
    a('ds_read_b128 v[40:43], v53\nds_read_b128 v[44:47], v53 offset:64')
    for s in range(4):
        a(f's_waitcnt lgkmcnt({min(15, 2 + 5*(3-s))})')
        for t in range(2):
            acc = f'v[{60+4*t}:{63+4*t}]'
            a(f'v_mfma_f32_16x16x32_bf16 {acc}, v[{72+16*t+4*s}:{75+16*t+4*s}], v[{24+4*s}:{27+4*s}], {"0" if s == 0 else acc}')
    a('s_waitcnt lgkmcnt(0)\nv_max3_f32 v40, v40, v41, v42\nv_add_f32 v44, v44, v45\nv_add_f32 v46, v46, v47\nv_max_f32 v40, v40, v43\nv_add_f32 v44, v44, v46')
    for r in range(4): a(f'v_cndmask_b32 v{60+r}, v{60+r}, v{64+r}, s[66:67]')
    for r in range(4): a(f'v_cndmask_b32 v{60+r}, v{60+r}, v{40 + 4*(r&1)}, s[64:65]')
    for r in range(4): a(f'v_bfi_b32 v{60+r}, v8, {T10[r]}, v{60+r}')
    a('s_mov_b32 exec_lo, s68\ns_mov_b32 exec_hi, 0x00ff00ff')
    store_mode('global_store_dwordx4 v54, v[60:63], s[26:27]')
    exec_all()
    stamp(8)
    a('L_h2_poll:')
    a('global_load_dwordx4 v[24:27], v55, s[26:27] sc1\nglobal_load_dwordx4 v[28:31], v55, s[26:27] offset:16 sc1\nglobal_load_dwordx4 v[32:35], v56, s[26:27] sc1')
    spin_guard()
    a('s_waitcnt vmcnt(0)')
    untag(range(24, 36), T10 * 3, 36, '0x3ff')
    a('v_cmp_ne_u32 vcc, 0, v36\ns_cbranch_vccnz L_h2_poll')
    stamp(9)
    dpp('v_max_f32', 36, 32, 32, 'row_ror:8'); dpp('v_max_f32', 36, 36, 36, 'row_ror:4'); dpp('v_max_f32', 36, 36, 36, 'quad_perm:[2,3,0,1]')
    to63('v_max_f32', [36])
    a('v_readlane_b32 s58, v36, 63')
    a(f'v_subrev_f32 v32, s58, v32\nv_mul_f32 v32, {LOG2E}, v32\nv_exp_f32 v32, v32')
    a('v_mul_f32 v33, v32, v33')
    for i in range(8): a(f'v_mul_f32 v{24+i}, v32, v{24+i}')
    dpp('v_add_f32', 33, 33, 33, 'row_ror:8')
    for i in range(4): a(f'v_permlane32_swap_b32 v{24+i}, v{28+i}')
    dpp('v_add_f32', 33, 33, 33, 'row_ror:4')
    for i in range(4): a(f'v_add_f32 v{24+i}, v{24+i}, v{28+i}')
    dpp('v_add_f32', 33, 33, 33, 'quad_perm:[2,3,0,1]')
    a('v_permlane16_swap_b32 v24, v26\nv_permlane16_swap_b32 v25, v27')
    dpp('v_add_f32', 33, 33, 33, 'row_bcast:15', '0xa')
    a('v_add_f32 v24, v24, v26\nv_add_f32 v25, v25, v27')
    dpp('v_add_f32', 33, 33, 33, 'row_bcast:31', '0xc')
    dpp('v_add_f32', 24, 24, 24, 'row_ror:8'); dpp('v_add_f32', 25, 25, 25, 'row_ror:8')
    a('v_rcp_f32 v33, v33')
    dpp('v_add_f32', 24, 24, 24, 'row_ror:4'); dpp('v_add_f32', 25, 25, 25, 'row_ror:4')
    a('v_readlane_b32 s58, v33, 63')
    dpp('v_add_f32', 24, 24, 24, 'quad_perm:[2,3,0,1]'); dpp('v_add_f32', 25, 25, 25, 'quad_perm:[2,3,0,1]')
    a('v_mov_b32 v33, s58')
    for s in range(4): dpp('v_mul_f32', 26+s, 24+(s&1), 33, 'quad_perm:[0,0,2,2]' if s < 2 else 'quad_perm:[1,1,3,3]')
    for s in range(4): a(f'v_cvt_pk_bf16_f32 v{26+s}, v{26+s}, v{26+s}')
    for s in range(4):
        for j in range(4): a(f'v_and_b32 v{72+4*s+j}, v{26+s}, v{4+j}')
        if s == 0:
            a(f'v_lshrrev_b32 v30, 2, v14\ns_lshl_b32 s58, s30, 2\nv_add_u32 v30, s58, v30\nv_lshlrev_b32 v30, 12, v30\nv_lshl_add_u32 v30, v34+0, 5, v30'.replace('v34+0', 'v57').replace('v_lshrrev_b32 v30, 2, v14', 'v_and_b32 v57, 3, v1\nv_lshrrev_b32 v30, 2, v14'))
        a(f'v_mfma_f32_16x16x32_bf16 v[60:63], v[{72+4*s}:{75+4*s}], v[{112+4*s}:{115+4*s}], {"0" if s == 0 else "v[60:63]"}')
    a(f's_lshl_b32 s58, s28, 16\ns_lshl_b32 s59, s29, 7\ns_add_u32 s59, s59, s58\ns_add_u32 s59, s59, {H3A_OFF}\nv_lshl_add_u32 v30, v2, 4, v30\nv_add_u32 v30, s59, v30')
    for r in range(4): a(f'v_bfi_b32 v{60+r}, v8, {T10[r]}, v{60+r}')
    a('s_mov_b32 exec_hi, 0')
    store_mode('global_store_dwordx4 v30, v[60:63], s[26:27]')
    exec_all()
    stamp(10)
    a(f's_cmp_lt_u32 s29, {NFFN}\ns_cbranch_scc1 L_ffn')
    a('s_cmp_lg_u32 s30, 0\ns_cbranch_scc1 L_fin')
    a('v_mul_u32_u24 v40, 10, v2\nv_lshrrev_b64 v[40:41], v40, s[32:33]\nv_and_b32 v40, 0x3ff, v40')
    a(f's_cmp_ge_u32 s29, {NFFN+16}\ns_cbranch_scc1 L_h4')
    a(f's_sub_u32 s59, s29, {NFFN}\ns_lshl_b32 s62, s59, 12\ns_add_u32 s58, s58, s62\ns_add_u32 s58, s58, {H3A_OFF}\nv_add_u32 v42, s58, v10')
    a(f's_lshl_b32 s58, s28, 11\ns_lshl_b32 s59, s59, 7\ns_add_u32 s58, s58, s59\ns_add_u32 s58, s58, {H3B_OFF}\nv_and_b32 v43, 7, v1\nv_lshlrev_b32 v43, 4, v43\nv_lshl_add_u32 v43, v2, 2, v43\nv_add_u32 v43, s58, v43')
    a('L_h3a_poll:')
    for i in range(4): a(f'global_load_dwordx4 v[{72+4*i}:{75+4*i}], v42, s[26:27] offset:{i*1024} sc1')
    spin_guard()
    a('s_waitcnt vmcnt(0)')
    untag(range(72, 88), T10 * 4, 36, '0x3ff')
    a('v_cmp_ne_u32 vcc, 0, v36\ns_cbranch_vccnz L_h3a_poll')
    stamp(11)
    def sum16():
        for r in range(4): a(f'v_add_f32 v{72+r}, v{72+r}, v{76+r}\nv_add_f32 v{80+r}, v{80+r}, v{84+r}')
        for r in range(4): a(f'v_add_f32 v{72+r}, v{72+r}, v{80+r}')
        a('v_permlane32_swap_b32 v72, v74\nv_permlane32_swap_b32 v73, v75\nv_add_f32 v72, v72, v74\nv_add_f32 v73, v73, v75\nv_permlane16_swap_b32 v72, v73\nv_add_f32 v72, v72, v73')
        dpp('v_add_f32', 72, 72, 72, 'row_ror:8')
    sum16()
    a('v_bfi_b32 v72, v8, v40, v72')
    exec_set(0x00ff00ff, 0x00ff00ff)
    a('global_store_dword v43, v72, s[26:27] sc1'); exec_all()
    stamp(12)
    a('s_cmp_lt_u32 s29, 24\ns_cbranch_scc1 L_fin')
    a('L_h4:')
    a('s_lshl_b32 s58, s28, 3\ns_add_u32 s58, s58, s29\ns_sub_u32 s58, s58, 24')
    a('v_and_b32 v44, 1, v1\nv_lshl_add_u32 v44, v44, 2, v2\ns_lshl_b32 s59, s58, 3\nv_add_u32 v44, s59, v44\nv_lshlrev_b32 v45, 1, v44')
    a('global_load_ushort v46, v45, s[4:5]')
    a(f'v_bfe_u32 v47, v1, 1, 3\nv_lshlrev_b32 v47, 11, v47\nv_lshl_add_u32 v47, v44, 2, v47\nv_add_u32 v47, {H3B_OFF}, v47')
    a(f's_lshl_b32 s59, s58, 12\ns_add_u32 s59, s59, {H4_OFF}\nv_add_u32 v42, s59, v10')
    a('L_hh_poll:\nglobal_load_dword v48, v47, s[26:27] sc1')
    spin_guard()
    a('s_waitcnt vmcnt(0)\nv_xor_b32 v48, v40, v48\nv_and_b32 v36, 0x3ff, v48\nv_cmp_ne_u32 vcc, 0, v36\ns_cbranch_vccnz L_hh_poll')
    dpp('v_add_f32', 48, 48, 48, 'row_ror:8'); dpp('v_add_f32', 48, 48, 48, 'row_ror:4'); dpp('v_add_f32', 48, 48, 48, 'quad_perm:[2,3,0,1]')
    bf16r(48, 48)
    a('v_lshlrev_b32 v46, 16, v46\nv_add_f32 v48, v48, v46'); bf16r(48, 48)
    stamp(13)
    a('L_h4_poll:')
    for i in range(3): a(f'global_load_dwordx4 v[{72+4*i}:{75+4*i}], v42, s[26:27] offset:{i*1024} sc1')
    for r in range(4): a(f'v_mov_b32 v{84+r}, {T10[r]}')
    a('s_mov_b32 exec_hi, 0\nglobal_load_dwordx4 v[84:87], v42, s[26:27] offset:3072 sc1\ns_mov_b64 exec, -1')
    spin_guard()
    a('s_waitcnt vmcnt(0)')
    untag(range(72, 88), T10 * 4, 36, '0x3ff')
    a('v_cmp_ne_u32 vcc, 0, v36\ns_cbranch_vccnz L_h4_poll')
    stamp(14)
    sum16()
    dpp('v_add_f32', 72, 72, 72, 'row_ror:4'); dpp('v_add_f32', 72, 72, 72, 'quad_perm:[2,3,0,1]')
    bf16r(72, 72)
    a('v_add_f32 v72, v72, v48\nv_cvt_pk_bf16_f32 v72, v72, v72')
    exec_set(0x00030003, 0x00030003)
    a('global_store_short v45, v72, s[22:23]')
    a('s_cmp_lg_u32 s58, 63\ns_cbranch_scc1 L_fin0')
    a('s_mov_b64 exec, 1\nv_mov_b32 v74, s32\nv_mov_b32 v75, s33\nv_mov_b32 v76, 0\nglobal_store_dwordx2 v76, v[74:75], s[26:27]')
    a('L_fin0:'); exec_all()
    a('s_branch L_fin')
    a('L_ffn:')
    a(f's_mul_i32 s56, s28, {NFFN}\ns_add_u32 s56, s56, s29')
    a(f's_mul_i32 s58, s30, {128*3584}\ns_lshl_b32 s59, s56, 5\ns_add_u32 s58, s58, s59\nv_lshrrev_b32 v40, 1, v1\nv_mul_u32_u24 v40, 3584, v40\nv_and_b32 v41, 1, v1\nv_lshl_add_u32 v40, v41, 4, v40\nv_add_u32 v40, s58, v40')
    a('s_mov_b32 m0, s31')
    for i in range(4):
        a(f'global_load_lds_dwordx4 v40, s[16:17]{NT}\ns_add_u32 m0, m0, 4096')
        a(f'global_load_lds_dwordx4 v40, s[18:19]{NT}')
        if i < 3: a(f's_sub_u32 m0, m0, 3072\nv_add_u32 v40, {32*3584}, v40')
    a('s_lshl_b32 s58, s56, 14\ns_lshl_b32 s59, s30, 8\ns_add_u32 s58, s58, s59\nv_lshlrev_b32 v41, 4, v14\nv_lshl_add_u32 v41, v2, 12, v41\nv_add_u32 v41, s58, v41')
    for s in range(4): a(f'global_load_dwordx4 v[{112+4*s}:{115+4*s}], v41, s[20:21] offset:{s*1024}{NT}')
    a('v_and_b32 v47, 31, v1\nv_lshrrev_b32 v46, 5, v1\nv_lshlrev_b32 v42, 3, v47\nv_lshl_add_u32 v42, v46, 2, v42\nv_add_u32 v42, s59, v42\nglobal_load_dword v43, v42, s[4:5]')
    a(f's_lshl_b32 s58, s30, 9\ns_add_u32 s58, s58, {H3B_OFF + 4096}\nv_lshlrev_b32 v44, 13, v46\nv_lshl_add_u32 v44, v47, 4, v44\nv_add_u32 v44, s58, v44')
    a('v_lshlrev_b32 v45, 3, v1\nv_add_u32 v45, s31, v45')
    a(f's_add_u32 s58, s59, {L_HN}\nv_lshrrev_b32 v48, 3, v47\nv_lshlrev_b32 v48, 6, v48\nv_lshl_add_u32 v48, v57, 4, v48\nv_bfe_u32 v49, v1, 2, 1\nv_lshl_add_u32 v48, v49, 3, v48\nv_lshl_add_u32 v48, v46, 2, v48\nv_add_u32 v48, s58, v48')
    a('v_lshlrev_b32 v49, 4, v2\nv_add_u32 v52, %d, v49\nv_add_u32 v49, s58, v49' % L_GU)
    a(f's_lshl_b32 s58, s30, 3\ns_add_u32 s58, s58, {L_ST}\nv_mov_b32 v50, s58\ns_lshl_b32 s58, s30, 7\nv_add_u32 v51, s58, v52\nv_mov_b32 v54, {L_ST}')
    a(f's_lshl_b32 s58, s30, 16\ns_lshl_b32 s59, s56, 5\ns_add_u32 s58, s58, s59\ns_add_u32 s58, s58, {H4_OFF}\nv_lshlrev_b32 v53, 12, v14\nv_lshl_add_u32 v53, v2, 4, v53\nv_add_u32 v53, s58, v53')
    a('s_waitcnt vmcnt(5)')
    for m in range(2):
        for s in range(4):
            for j in range(2): a(f'ds_read_b64_tr_b16 v[{72+16*m+4*s+2*j}:{73+16*m+4*s+2*j}], v45 offset:{m*4096+s*1024+j*512}')
    stamp(11)
    a('L_h3b_poll:')
    for i in range(4): a(f'global_load_dwordx4 v[{24+4*i}:{27+4*i}], v44, s[26:27] offset:{(i-2)*2048} sc1')
    spin_guard()
    a('s_waitcnt vmcnt(0)')
    untag(range(24, 40), T10 * 4, 55, '0x3ff')
    a('v_cmp_ne_u32 vcc, 0, v55\ns_cbranch_vccnz L_h3b_poll')
    stamp(12)
    for r in range(4): a(f'v_add_f32 v{24+r}, v{24+r}, v{28+r}\nv_add_f32 v{32+r}, v{32+r}, v{36+r}')
    for r in range(4): a(f'v_add_f32 v{24+r}, v{24+r}, v{32+r}')
    a('v_permlane32_swap_b32 v24, v26\nv_permlane32_swap_b32 v25, v27\nv_add_f32 v24, v24, v26\nv_add_f32 v25, v25, v27\nv_cvt_pk_bf16_f32 v26, v24, v25')
    unpack(28, 29, 43); unpack(24, 25, 26)
    a('v_add_f32 v24, v24, v28\nv_add_f32 v25, v25, v29\nv_cvt_pk_bf16_f32 v26, v24, v25'); unpack(24, 25, 26)
    a('v_readfirstlane_b32 s58, v24\nv_subrev_f32 v26, s58, v24\nv_subrev_f32 v27, s58, v25\nv_add_f32 v28, v26, v27\nv_mul_f32 v29, v26, v26\nv_fmac_f32 v29, v27, v27')
    row16('v_add_f32', [28, 29]); to63('v_add_f32', [28, 29])
    a('v_mul_f32 v30, 0x3c000000, v28\nv_fma_f32 v29, -v30, v28, v29\nv_add_f32 v28, s58, v30')
    exec_set(0, 0x80000000)
    a('ds_write_b64 v50, v[28:29]'); exec_all()
    a('s_waitcnt lgkmcnt(0)\ns_barrier\nds_read_b128 v[28:31], v54\nds_read_b128 v[32:35], v54 offset:16\ns_waitcnt lgkmcnt(0)')
    a('v_add_f32 v36, v28, v30\nv_add_f32 v37, v32, v34\nv_add_f32 v29, v29, v31\nv_add_f32 v36, v36, v37\nv_add_f32 v33, v33, v35\nv_mul_f32 v36, 0.5, v36\nv_add_f32 v29, v29, v33\nv_mul_f32 v36, 0.5, v36')
    a('v_sub_f32 v28, v28, v36\nv_sub_f32 v30, v30, v36\nv_sub_f32 v32, v32, v36\nv_sub_f32 v34, v34, v36\nv_mul_f32 v28, v28, v28\nv_mul_f32 v32, v32, v32\nv_fmac_f32 v28, v30, v30\nv_fmac_f32 v32, v34, v34')
    bf16r(36, 36)
    a('v_add_f32 v28, v28, v32\nv_mul_f32 v29, 0x3b000000, v29\nv_fmac_f32 v29, 0x3e800000, v28')
    a('v_sub_f32 v24, v24, v36\nv_sub_f32 v25, v25, v36')
    bf16r(29, 29)
    a('v_cvt_pk_bf16_f32 v26, v24, v25\nv_add_f32 v29, 0x3727c5ac, v29'); bf16r(29, 29)
    a('v_sqrt_f32 v29, v29'); unpack(24, 25, 26); bf16r(29, 29)
    a('v_rcp_f32 v29, v29\nv_mul_f32 v24, v24, v29\nv_mul_f32 v25, v25, v29\nv_cvt_pk_bf16_f32 v26, v24, v25\nds_write_b32 v48, v26\ns_waitcnt lgkmcnt(0)')
    for s in range(4): a(f'ds_read_b128 v[{24+4*s}:{27+4*s}], v49 offset:{s*64}')
    for s in range(4):
        a(f's_waitcnt lgkmcnt({3-s})')
        for m in range(2):
            acc = f'v[{60+4*m}:{63+4*m}]'
            a(f'v_mfma_f32_16x16x32_bf16 {acc}, v[{72+16*m+4*s}:{75+16*m+4*s}], v[{24+4*s}:{27+4*s}], {"0" if s == 0 else acc}')
    exec_set(0x00010001, 0x00010001)
    a('ds_write_b128 v51, v[60:63]\nds_write_b128 v51, v[64:67] offset:64'); exec_all()
    a('s_waitcnt lgkmcnt(0)\ns_barrier')
    for w in range(4):
        for m in range(2): a(f'ds_read_b128 v[{72+16*m+4*w}:{75+16*m+4*w}], v52 offset:{w*128+m*64}')
    a('s_waitcnt lgkmcnt(4)')
    for m in range(2):
        for r in range(4): a(f'v_add_f32 v{72+16*m+r}, v{72+16*m+r}, v{76+16*m+r}')
    a('s_waitcnt lgkmcnt(0)')
    for m in range(2):
        for r in range(4): a(f'v_add_f32 v{80+16*m+r}, v{80+16*m+r}, v{84+16*m+r}')
    for m in range(2):
        for r in range(4): a(f'v_add_f32 v{72+16*m+r}, v{72+16*m+r}, v{80+16*m+r}')
    for r in range(4): a(f'v_cvt_pk_bf16_f32 v{76+r}, v{72+r}, v{88+r}')
    for r in range(4): unpack(72+r, 88+r, 76+r)
    for r in range(4): a(f'v_mul_f32 v{72+r}, v{72+r}, v{88+r}')
    for r in range(4): a(f'v_cvt_pk_bf16_f32 v{72+r}, v{72+r}, v{72+r}')
    for s in range(4):
        for j in range(4): a(f'v_and_b32 v{24+4*s+j}, v{72+s}, v{4+j}')
        a(f'v_mfma_f32_16x16x32_bf16 v[60:63], v[{24+4*s}:{27+4*s}], v[{112+4*s}:{115+4*s}], {"0" if s == 0 else "v[60:63]"}')
    for r in range(4): a(f'v_bfi_b32 v{60+r}, v8, {T10[r]}, v{60+r}')
    a('s_mov_b32 exec_hi, 0\nglobal_store_dwordx4 v53, v[60:63], s[26:27] sc1')
    exec_all()
    stamp(13)
    a('L_fin:')
    if diag:
        stamp(15)
        a(f'v_writelane_b32 v200, s98, 16\ns_lshl_b32 s58, s2, 2\ns_add_u32 s58, s58, s30\ns_lshl_b32 s58, s58, 8\ns_add_u32 s58, s58, {TS_OFF}\nv_lshlrev_b32 v201, 2, v1\nv_add_u32 v201, s58, v201\nv_writelane_b32 v200, s43, 17\nv_writelane_b32 v200, s42, 18\nglobal_store_dword v201, v200, s[26:27]')
    a('s_endpgm')
    a('L_q_retry:')
    qpoll(); spin_guard()
    a('s_waitcnt vmcnt(0)\ns_branch L_q_chk')
    for s in slow: a(s)
    a('L_end:\ns_endpgm')
    body = '\n'.join(pad(a.l)) + '\n'
    return header(256, 256, (L_END + 255)//256*256) + body + footer(208 if diag else 128)

if __name__ == '__main__':
    import ast
    kw = {}
    for x in sys.argv[2:]:
        k, v = x.split('=')
        try: kw[k] = ast.literal_eval(v)
        except Exception: kw[k] = v
    open(sys.argv[1], 'w').write(gen(**kw))
```
